```python
import torch

def _softmax(x, axis=-1):
    return torch.softmax(x, dim=axis)
def _gelu(x):
    return torch.nn.functional.gelu(x, approximate="tanh")
def _silu(x):
    return torch.nn.functional.silu(x)
def _sigmoid(x):
    return torch.sigmoid(x)
def _layernorm(x, axis=-1, eps=1e-5):
    m = x.mean(dim=axis, keepdim=True)
    v = x.var(dim=axis, keepdim=True, unbiased=False)
    return (x - m) / torch.sqrt(v + eps)
def _scatter_add(tgt, idx, src, axis=0):
    return tgt.clone().index_add_(axis, idx, src)
def _segment_sum(src, seg, n):
    out = torch.zeros((n,) + src.shape[1:], dtype=src.dtype)
    return out.index_add_(0, seg, src)
def _pad(x, pw):
    flat = tuple(v for pair in reversed(pw) for v in pair)
    return torch.nn.functional.pad(x, flat)

kernel_name = 'concat_heads__sliding_block__grouped_kv_mqa__prompt'

def setup_inputs():

    _w = (lambda a: (lambda t: t.to(torch.bfloat16) if t.is_floating_point() else t)(torch.as_tensor(a)))
    def _A_setup():
        B, S, D = 1, 2048, 640
        return {
            "x": _w((lambda *s: torch.randn(*s, dtype=torch.bfloat16) * 0.2)(B, S, D)),
            "wqkv": _w((lambda *s: torch.randn(*s, dtype=torch.bfloat16) * 0.8)(D, 3 * D)),
            "wo": _w((lambda *s: torch.randn(*s, dtype=torch.bfloat16) * 0.4)(D, D)),
        }
    _A_in = _A_setup()

    def _B_setup():
        B, S, D, H = 1, 2048, 640, 32
        Dh = D // H
        return {
            "x": _w((lambda *s: torch.randn(*s, dtype=torch.bfloat16) * 0.1)(B, S, D)),
            "wq": _w((lambda *s: torch.randn(*s, dtype=torch.bfloat16) * 0.8)(D, H * Dh)),
            "wk": _w((lambda *s: torch.randn(*s, dtype=torch.bfloat16) * 0.8)(D, Dh)),
            "wv": _w((lambda *s: torch.randn(*s, dtype=torch.bfloat16) * 0.8)(D, Dh)),
            "wo": _w((lambda *s: torch.randn(*s, dtype=torch.bfloat16) * 0.8)(H * Dh, D)),
        }
    _B_in = _B_setup()

    return {
        "A_x": _A_in["x"],
        "A_wqkv": _A_in["wqkv"],
        "A_wo": _A_in["wo"],
        "B_x": _B_in["x"],
        "B_wq": _B_in["wq"],
        "B_wk": _B_in["wk"],
        "B_wv": _B_in["wv"],
        "B_wo": _B_in["wo"],
    }

def reference(A_x, A_wqkv, A_wo, B_x, B_wq, B_wk, B_wv, B_wo):
    def _A_ref(x, wqkv, wo):
        B, S, D = x.shape
        H = 32; Dh = D // H; W = 256
        qkv = (lambda x, *d: x.permute(*d))((x @ wqkv).reshape(B, S, 3, H, Dh), 2, 0, 3, 1, 4)
        q, k, v = qkv[0], qkv[1], qkv[2]
        scores = torch.einsum("bhqd,bhkd->bhqk", q, k) * (Dh ** -0.5)
        idx = torch.arange(S)
        mask = (idx[:, None] - idx[None, :] >= 0) & (idx[:, None] - idx[None, :] < W)
        scores = torch.where(mask[None, None], scores, -1e9)
        p = _softmax(scores, axis=-1)
        o = torch.einsum("bhqk,bhkd->bhqd", p, v)
        return (lambda x, *d: x.permute(*d))(o, 0, 2, 1, 3).reshape(B, S, D) @ wo

    def _B_ref(x, wq, wk, wv, wo):
        B, S, D = x.shape
        H = 32
        Dh = D // H
        q = (lambda x, *d: x.permute(*d))((x @ wq).reshape(B, S, H, Dh), 0, 2, 1, 3)
        k = x @ wk
        v = x @ wv
        scores = torch.einsum("bhqd,bkd->bhqk", q, k) * (Dh ** -0.5)
        p = _softmax(scores, axis=-1)
        o = torch.einsum("bhqk,bkd->bhqd", p, v)
        return (lambda x, *d: x.permute(*d))(o, 0, 2, 1, 3).reshape(B, S, H * Dh) @ wo

    a = _A_ref(A_x, A_wqkv, A_wo)
    b = _B_ref(B_x, B_wq, B_wk, B_wv, B_wo)
    return torch.concatenate([a, b], axis=-1)
```

```python
import struct, math


class Asm:
    def __init__(self):
        self.lines = []

    def __call__(self, s=""):
        for l in s.strip("\n").split("\n"):
            l = l.strip()
            if not l:
                continue
            if l.endswith(":") or l.startswith("."):
                self.lines.append(l)
            else:
                self.lines.append("    " + l)

    def c(self, s):
        self.lines.append("    ; " + s)

    def text(self):
        return "\n".join(self.lines) + "\n"


def v(a, n=1):
    return f"v{a}" if n == 1 else f"v[{a}:{a+n-1}]"


def s(a, n=1):
    return f"s{a}" if n == 1 else f"s[{a}:{a+n-1}]"


def f32(x):
    return "0x%08x" % struct.unpack("<I", struct.pack("<f", x))[0]


class Regs:
    def __init__(self, start=1):
        self.n = start
        self.hi = start

    def get(self, cnt=1, align=1):
        if cnt >= 2 and align < 2:
            align = 2
        self.n = (self.n + align - 1) // align * align
        r = self.n
        self.n += cnt
        self.hi = max(self.hi, self.n)
        return r


def interleave(main, fill, start=0, step=1):
    out = []
    fi = 0
    for i, m in enumerate(main):
        out.append(m)
        if i >= start and (i - start) % step == 0 and fi < len(fill):
            out.append(fill[fi])
            fi += 1
    out += fill[fi:]
    return out


def srd(a, dst, base, nbytes):
    a(f"""s_mov_b32 {s(dst)}, {s(base)}
    s_mov_b32 {s(dst+1)}, {s(base+1)}
    s_mov_b32 {s(dst+2)}, {nbytes}
    s_mov_b32 {s(dst+3)}, 0x00020000""")


def kernel_head(a, name):
    a(f""".globl {name}
.p2align 8
.type {name},@function
{name}:""")


def kernel_desc(name, vgpr, sgpr=102):
    acc = (vgpr + 3) // 4 * 4
    return f""".section .rodata,"a"
.p2align 6
.amdhsa_kernel {name}
  .amdhsa_next_free_vgpr {vgpr}
  .amdhsa_next_free_sgpr {sgpr}
  .amdhsa_accum_offset {acc}
  .amdhsa_group_segment_fixed_size 0
  .amdhsa_kernarg_size 88
  .amdhsa_user_sgpr_count 2
  .amdhsa_user_sgpr_kernarg_segment_ptr 1
  .amdhsa_system_sgpr_workgroup_id_x 1
.end_amdhsa_kernel
"""
```

```python
from asmlib import *
from layout import *

SLOT = 45056
XOFF, WOFF, EKOFF, EVOFF = 0, 16384, 36864, 40960
K1_LDS = 3 * SLOT


def gen_k1(name="proj_kernel"):
    a = Asm()
    kernel_head(a, name)
    sX, sW, sWK, sWV, sWS = 16, 20, 24, 28, 32
    sTYP, sRB, sCB, sWID = 36, 37, 38, 39
    a(f"""s_cmp_ge_u32 s2, 256
    s_cbranch_scc1 {name}_end
    s_load_dwordx4 s[4:7], s[0:1], 0
    s_load_dwordx4 s[44:47], s[0:1], 24
    s_load_dwordx4 s[8:11], s[0:1], 40
    s_load_dwordx2 s[12:13], s[0:1], 80
    v_lshrrev_b32 v1, 6, v0
    v_and_b32 v0, 63, v0
    s_and_b32 s40, s2, 7
    v_readfirstlane_b32 {s(sWID)}, v1
    s_lshr_b32 s41, s2, 3
    s_lshr_b32 {s(sTYP)}, s40, 1
    s_and_b32 s40, s40, 1
    s_lshl_b32 s40, s40, 3
    s_lshr_b32 {s(sRB)}, s41, 2
    s_add_u32 {s(sRB)}, {s(sRB)}, s40
    s_and_b32 {s(sCB)}, s41, 3
    s_cmp_eq_u32 {s(sTYP)}, 3
    s_waitcnt lgkmcnt(0)
    s_cselect_b32 {s(sX)}, s44, s4
    s_cselect_b32 {s(sX+1)}, s45, s5
    s_cselect_b32 {s(sW)}, s46, s6
    s_cselect_b32 {s(sW+1)}, s47, s7
    s_mov_b32 {s(sX+2)}, {2048*1280}
    s_mov_b32 {s(sX+3)}, 0x00020000
    s_cselect_b32 {s(sW+2)}, {640*1280}, s2
    s_cbranch_scc1 {name}_isb
    s_mov_b32 {s(sW+2)}, {640*3840}
{name}_isb:
    s_mov_b32 {s(sW+3)}, 0x00020000""")
    srd(a, sWS, 12, WS_USED)
    a(f"""s_cmp_ge_u32 {s(sWID)}, 4
    s_cbranch_scc0 {name}_compute""")

    srd(a, sWK, 8, 25600)
    srd(a, sWV, 10, 25600)
    sLW, sSTR, sCOL, sSX, sSW, sSE, sSLOT, sC = 48, 49, 50, 51, 52, 53, 54, 55
    vXA = [2, 3, 4, 5]
    vWA = [6, 7, 8, 9, 10]
    vE = 11
    a(f"""s_sub_u32 {s(sLW)}, {s(sWID)}, 4
    s_cmp_eq_u32 {s(sTYP)}, 3
    s_cselect_b32 {s(sSTR)}, 1280, s2
    s_cselect_b32 s40, 0, {s(sTYP)}
    s_cbranch_scc1 {name}_l1
    s_mov_b32 {s(sSTR)}, 3840
{name}_l1:
    s_mul_i32 s40, s40, 1280
    s_mul_i32 {s(sCOL)}, {s(sCB)}, 320
    s_add_u32 {s(sCOL)}, {s(sCOL)}, s40
    v_lshrrev_b32 v12, 3, v0
    v_and_b32 v13, 7, v0
    s_lshl_b32 s41, {s(sLW)}, 5
    s_lshl_b32 s42, {s(sRB)}, 7
    s_add_u32 s41, s41, s42
    s_cmp_eq_u32 {s(sTYP)}, 2
    s_cselect_b64 s[56:57], -1, 0
    s_movk_i32 s43, 1280""")
    for i in range(4):
        a(f"""v_add_u32 v14, {8*i}, v12
        v_bfe_u32 v15, v14, 1, 3
        v_xor_b32 v15, v15, v13
        v_and_b32 v16, 3, v14
        v_bfe_u32 v17, v14, 2, 2
        v_lshl_add_u32 v16, v17, 3, v16
        v_add_u32 v16, {4*(i>>1)}, v16
        v_cndmask_b32 v14, v14, v16, s[56:57]
        v_add_u32 v14, s41, v14
        v_mul_lo_u32 v14, v14, s43
        v_lshl_add_u32 {v(vXA[i])}, v15, 4, v14""")
    a(f"""s_mul_i32 s41, {s(sLW)}, 320
    s_movk_i32 s42, 3277""")
    for i in range(5):
        a(f"""v_add_u32 v14, s41, v0
        v_add_u32 v14, {64*i}, v14
        v_mul_u32_u24 v15, s42, v14
        v_lshrrev_b32 v15, 16, v15
        v_mul_u32_u24 v16, 20, v15
        v_sub_u32 v14, v14, v16
        v_bfe_u32 v16, v15, 3, 1
        v_lshlrev_b32 v16, 1, v16
        v_sub_u32 v14, v14, v16
        v_add_u32 v16, 20, v14
        v_min_u32 v14, v14, v16
        v_mul_lo_u32 v15, v15, {s(sSTR)}
        v_lshl_add_u32 v15, v14, 4, v15
        v_add_u32 {v(vWA[i])}, {s(sCOL)}, v15""")
    a(f"""s_lshl_b32 s41, {s(sLW)}, 10
    v_lshl_add_u32 {v(vE)}, v0, 4, s41
    s_lshl_b32 {s(sSTR)}, {s(sSTR)}, 6
    s_mov_b32 {s(sSX)}, 0
    s_mov_b32 {s(sSW)}, 0
    s_mov_b32 {s(sSE)}, 0
    s_lshl_b32 s58, {s(sLW)}, 12
    s_mul_i32 s59, {s(sLW)}, 5120
    s_add_u32 s59, s59, {WOFF}
    s_lshl_b32 s60, {s(sLW)}, 10
    s_add_u32 s60, s60, {EKOFF}
    s_mov_b32 {s(sSLOT)}, 0
    s_mov_b32 {s(sC)}, 0
    s_cmp_eq_u32 {s(sTYP)}, 3
    s_cbranch_scc1 {name}_lb""")

    def issue(isb):
        a(f"s_add_u32 s61, s58, {s(sSLOT)}")
        for i in range(4):
            a(f"""s_add_u32 m0, s61, {1024*i}
            s_nop 0
            buffer_load_dwordx4 {v(vXA[i])}, {s(sX,4)}, {s(sSX)} offen lds""")
        a(f"s_add_u32 s61, s59, {s(sSLOT)}")
        for i in range(5):
            a(f"""s_add_u32 m0, s61, {1024*i}
            s_nop 0
            buffer_load_dwordx4 {v(vWA[i])}, {s(sW,4)}, {s(sSW)} offen lds""")
        if isb:
            a(f"""s_add_u32 m0, s60, {s(sSLOT)}
            s_nop 0
            buffer_load_dwordx4 {v(vE)}, {s(sWK,4)}, {s(sSE)} offen lds
            s_add_u32 m0, m0, 4096
            s_nop 0
            buffer_load_dwordx4 {v(vE)}, {s(sWV,4)}, {s(sSE)} offen lds
            s_add_u32 {s(sSE)}, {s(sSE)}, 2560""")
        a(f"""s_add_u32 {s(sSX)}, {s(sSX)}, 128
        s_add_u32 {s(sSW)}, {s(sSW)}, {s(sSTR)}
        s_add_u32 {s(sSLOT)}, {s(sSLOT)}, {SLOT}
        s_cmp_eq_u32 {s(sSLOT)}, {3*SLOT}
        s_cselect_b32 {s(sSLOT)}, 0, {s(sSLOT)}""")

    for isb in (0, 1):
        tag = f"{name}_l{'b' if isb else 'a'}"
        N = 11 if isb else 9
        if isb:
            a(f"{tag}:")
        a(f"{tag}_loop:")
        issue(isb)
        a(f"""s_add_u32 {s(sC)}, {s(sC)}, 1
        s_cmp_lt_u32 {s(sC)}, 3
        s_cbranch_scc1 {tag}_loop
        s_cmp_eq_u32 {s(sC)}, 3
        s_cbranch_scc0 {tag}_st
        s_waitcnt vmcnt({2*N})
        s_barrier
{tag}_st:
        s_waitcnt vmcnt({N})
        s_barrier
        s_cmp_lt_u32 {s(sC)}, 10
        s_cbranch_scc1 {tag}_loop
        s_waitcnt vmcnt(0)
        s_barrier
        s_barrier""")
        if isb:
            a(f"""v_and_b32 v14, 3, v0
            v_mul_u32_u24 v14, 336, v14
            s_lshl_b32 s41, {s(sRB)}, 2
            s_add_u32 s41, s41, {s(sCB)}
            s_mul_i32 s41, s41, {TS}
            s_add_u32 s41, s41, {KVB + 1536 + 320}""")
        else:
            a(f"""s_cmp_eq_u32 {s(sTYP)}, 2
            s_cbranch_scc0 {name}_end
            v_and_b32 v14, 3, v0
            v_mul_u32_u24 v14, 336, v14
            v_bfe_u32 v15, v0, 2, 3
            s_mov_b32 s42, {64*TS}
            v_mul_lo_u32 v15, v15, s42
            v_add_u32 v14, v14, v15
            s_lshl_b32 s41, {s(sCB)}, 9
            s_lshl_b32 s42, {s(sRB)}, 2
            s_add_u32 s41, s41, s42
            s_add_u32 s41, s41, {s(sLW)}
            s_mul_i32 s41, s41, {TS}
            s_add_u32 s41, s41, {KVA + 1536 + 320}""")
        a(f"""v_mov_b32 v16, 0x3f803f80
        v_mov_b32 v17, 0x3f803f80
        v_mov_b32 v18, 0x3f803f80
        v_mov_b32 v19, 0x3f803f80
        buffer_store_dwordx4 v[16:19], v14, {s(sWS,4)}, s41 offen
        s_endpgm""")

    R = Regs(1)
    vAX = [R.get(), R.get()]
    vAW = [R.get() for _ in range(5)]
    vEX = [R.get(), R.get()]
    vEW = R.get()
    tmp = [R.get() for _ in range(8)]
    ACC = R.get(80, 4)
    EACC = R.get(8, 4)
    XF = [R.get(16, 4), R.get(16, 4)]
    WF = [R.get(20, 4), R.get(20, 4)]
    EXF = [R.get(4, 4), R.get(4, 4)]
    EWF = [R.get(8, 4), R.get(8, 4)]
    nvgpr = R.hi
    sWR, sWC, sDL, sSL, sCNT = 48, 49, 50, 51, 52
    t0, t1, t2, t3, t4, t5, t6, t7 = tmp

    def acc(pb, b):
        return ACC + 4 * (5 * pb + b)

    a(f"""{name}_compute:
    s_lshr_b32 {s(sWR)}, {s(sWID)}, 1
    s_and_b32 {s(sWC)}, {s(sWID)}, 1
    v_and_b32 {v(t0)}, 15, v0
    v_lshrrev_b32 {v(t1)}, 4, v0
    v_bfe_u32 {v(t2)}, v0, 1, 3
    v_xor_b32 {v(t2)}, {v(t2)}, {v(t1)}
    v_lshlrev_b32 {v(t2)}, 4, {v(t2)}
    v_lshl_add_u32 {v(t2)}, {v(t0)}, 7, {v(t2)}
    s_lshl_b32 s40, {s(sWR)}, 13
    v_add_u32 {v(vAX[0])}, s40, {v(t2)}
    v_xor_b32 {v(vAX[1])}, 64, {v(vAX[0])}
    s_lshl_b32 s40, {s(sCB)}, 12
    s_lshl_b32 s41, {s(sWC)}, 11
    s_add_u32 s40, s40, s41
    v_add_u32 {v(vEX[0])}, s40, {v(t2)}
    v_xor_b32 {v(vEX[1])}, 64, {v(vEX[0])}
    v_bfe_u32 {v(t2)}, v0, 2, 2
    v_lshl_add_u32 {v(t2)}, {v(t1)}, 3, {v(t2)}
    v_and_b32 {v(t3)}, 3, v0
    v_mul_u32_u24 {v(t4)}, 40, {v(t2)}
    v_lshl_add_u32 {v(t4)}, {v(t3)}, 3, {v(t4)}
    s_lshl_b32 s40, {s(sWR)}, 12
    s_add_u32 s40, s40, {EKOFF}
    v_add_u32 {v(vEW)}, s40, {v(t4)}
    v_mul_u32_u24 {v(t2)}, 320, {v(t2)}
    v_add_u32 {v(t2)}, {WOFF}, {v(t2)}
    s_cmp_eq_u32 {s(sTYP)}, 2
    s_cselect_b32 s40, 8, 40
    s_cselect_b32 s41, 32, 8
    s_mul_i32 s42, {s(sWC)}, 160
    v_mul_u32_u24 {v(t3)}, s40, {v(t3)}
    v_add_u32 {v(t3)}, s42, {v(t3)}
    v_and_b32 {v(t4)}, 1, {v(t1)}
    v_lshl_add_u32 {v(t3)}, {v(t4)}, 5, {v(t3)}""")
    for b in range(5):
        a(f"""v_subrev_u32 {v(t4)}, 320, {v(t3)}
        v_min_u32 {v(t4)}, {v(t4)}, {v(t3)}
        v_add_u32 {v(vAW[b])}, {v(t4)}, {v(t2)}""")
        if b < 4:
            a(f"v_add_u32 {v(t3)}, s41, {v(t3)}")
    for i in range(88):
        a(f"v_mov_b32 {v(ACC+i)}, 0")
    a(f"""s_mov_b32 {s(sSL)}, 0
    s_mov_b32 {s(sCNT)}, 10""")

    def reads(buf, ks, kind):
        L = []
        xs = [f"ds_read_b128 {v(XF[buf]+4*pb,4)}, {v(vAX[ks])} offset:{2048*pb}" for pb in range(4)]
        ws = []
        for b in range(5):
            for u in range(2):
                ws.append(f"ds_read_b64_tr_b16 {v(WF[buf]+4*b+2*u,2)}, {v(vAW[b])} offset:{(32*ks+4*u)*320}")
        L = [xs[0]] + ws[0:4] + [xs[1]] + ws[4:10] + xs[2:]
        if kind in ("bk", "bv"):
            L.append(f"ds_read_b128 {v(EXF[buf],4)}, {v(vEX[ks])}")
            for fb in range(2):
                for u in range(2):
                    L.append(f"ds_read_b64_tr_b16 {v(EWF[buf]+4*fb+2*u,2)}, {v(vEW)} offset:{(32*ks+4*u)*40+32*fb}")
        return L

    def mfmas(buf, kind):
        L = []
        for pb in range(4):
            for b in range(5):
                w_, x_ = v(WF[buf] + 4 * b, 4), v(XF[buf] + 4 * pb, 4)
                A, B = (x_, w_) if kind == "v" else (w_, x_)
                L.append(f"v_mfma_f32_16x16x32_bf16 {v(acc(pb,b),4)}, {A}, {B}, {v(acc(pb,b),4)}")
        if kind in ("bk", "bv"):
            for fb in range(2):
                w_, x_ = v(EWF[buf] + 4 * fb, 4), v(EXF[buf], 4)
                A, B = (x_, w_) if kind == "bv" else (w_, x_)
                L.append(f"v_mfma_f32_16x16x32_bf16 {v(EACC+4*fb,4)}, {A}, {B}, {v(EACC+4*fb,4)}")
        return L

    a(f"""s_cmp_eq_u32 {s(sTYP)}, 2
    s_cbranch_scc1 {name}_c_v
    s_cmp_eq_u32 {s(sTYP)}, 3
    s_cbranch_scc0 {name}_c_qk
    s_cmp_ge_u32 {s(sWID)}, 2
    s_cbranch_scc1 {name}_c_bv""")
    for kind in ("bk", "bv", "v", "qk"):
        tag = f"{name}_c_{kind}"
        a(f"{tag}:")
        a("s_barrier")
        for l in reads(0, 0, kind):
            a(l)
        a(f"{tag}_loop:")
        a("s_waitcnt lgkmcnt(0)")
        for l in interleave(mfmas(0, kind), reads(1, 1, kind)):
            a(l)
        a(f"""s_add_u32 {s(sSL)}, {s(sSL)}, {SLOT}
        s_cmp_eq_u32 {s(sSL)}, {3*SLOT}
        s_cselect_b32 {s(sSL)}, 0, {s(sSL)}
        s_cselect_b32 {s(sDL)}, {(-2*SLOT) & 0xffffffff}, s2
        s_cbranch_scc1 {tag}_wrap
        s_mov_b32 {s(sDL)}, {SLOT}
{tag}_wrap:
        s_waitcnt lgkmcnt(0)
        s_barrier""")
        regs = vAX + vAW + (vEX + [vEW] if kind in ("bk", "bv") else [])
        for r in regs:
            a(f"v_add_u32 {v(r)}, {s(sDL)}, {v(r)}")
        for l in interleave(mfmas(1, kind), reads(0, 0, kind)):
            a(l)
        a(f"""s_sub_u32 {s(sCNT)}, {s(sCNT)}, 1
        s_cmp_lg_u32 {s(sCNT)}, 0
        s_cbranch_scc1 {tag}_loop
        s_waitcnt lgkmcnt(0)""")
        P = XF[0]
        if kind == "bk":
            a(f"""v_and_b32 {v(t0)}, 15, v0
            v_lshrrev_b32 {v(t1)}, 4, v0
            v_lshlrev_b32 {v(t0)}, 4, {v(t0)}
            v_lshrrev_b32 {v(t2)}, 1, {v(t1)}
            v_lshl_add_u32 {v(t2)}, {v(t2)}, 9, {v(t0)}
            v_and_b32 {v(t3)}, 1, {v(t1)}
            v_lshl_add_u32 {v(t2)}, {v(t3)}, 3, {v(t2)}
            v_lshl_add_u32 {v(t3)}, {v(t1)}, 28, {v(t0)}
            s_lshl_b32 s41, {s(sRB)}, 2
            s_add_u32 s41, s41, {s(sCB)}
            s_mul_i32 s41, s41, {TS}
            s_lshl_b32 s42, {s(sWC)}, 8
            s_add_u32 s41, s41, s42
            s_add_u32 s41, s41, {KVB}
            v_cvt_pk_bf16_f32 {v(P)}, {v(EACC)}, {v(EACC+1)}
            v_cvt_pk_bf16_f32 {v(P+1)}, {v(EACC+2)}, {v(EACC+3)}
            v_cvt_pk_bf16_f32 {v(P+4)}, {v(EACC+4)}, {v(EACC+5)}
            v_cvt_pk_bf16_f32 {v(P+5)}, {v(EACC+6)}, {v(EACC+7)}
            v_mov_b32 {v(P+6)}, 0x3f803f80
            v_mov_b32 {v(P+7)}, 0x00003f80
            buffer_store_dwordx2 {v(P,2)}, {v(t2)}, {s(sWS,4)}, s41 offen
            buffer_store_dwordx4 {v(P+4,4)}, {v(t3)}, {s(sWS,4)}, s41 offen offset:1024
            s_branch {name}_e_q""")
        elif kind == "bv":
            a(f"""v_and_b32 {v(t0)}, 15, v0
            v_lshrrev_b32 {v(t1)}, 4, v0
            v_lshlrev_b32 {v(t2)}, 4, {v(t0)}
            v_lshrrev_b32 {v(t3)}, 1, {v(t1)}
            v_mul_u32_u24 {v(t3)}, 336, {v(t3)}
            v_add_u32 {v(t2)}, {v(t2)}, {v(t3)}
            v_and_b32 {v(t3)}, 1, {v(t1)}
            v_lshl_add_u32 {v(t2)}, {v(t3)}, 3, {v(t2)}
            v_lshrrev_b32 {v(t3)}, 2, {v(t0)}
            v_lshl_add_u32 {v(t3)}, {v(t3)}, 28, {v(t2)}
            s_lshl_b32 s41, {s(sRB)}, 2
            s_add_u32 s41, s41, {s(sCB)}
            s_mul_i32 s41, s41, {TS}
            s_mul_i32 s42, {s(sWC)}, 672
            s_add_u32 s41, s41, s42
            s_add_u32 s41, s41, {KVB+1536}
            v_cvt_pk_bf16_f32 {v(P)}, {v(EACC)}, {v(EACC+1)}
            v_cvt_pk_bf16_f32 {v(P+1)}, {v(EACC+2)}, {v(EACC+3)}
            v_cvt_pk_bf16_f32 {v(P+2)}, {v(EACC+4)}, {v(EACC+5)}
            v_cvt_pk_bf16_f32 {v(P+3)}, {v(EACC+6)}, {v(EACC+7)}
            buffer_store_dwordx2 {v(P,2)}, {v(t2)}, {s(sWS,4)}, s41 offen
            buffer_store_dwordx2 {v(P+2,2)}, {v(t3)}, {s(sWS,4)}, s41 offen offset:256
            s_branch {name}_e_q""")
        elif kind == "v":
            a(f"""v_and_b32 {v(t0)}, 15, v0
            v_lshrrev_b32 {v(t1)}, 4, v0
            v_mul_u32_u24 {v(t1)}, 336, {v(t1)}
            s_mul_i32 s40, {s(sWC)}, 80
            v_add_u32 {v(t0)}, s40, {v(t0)}
            s_movk_i32 s42, 3277
            s_mov_b32 s43, {64*TS}
            s_lshl_b32 s41, {s(sCB)}, 9
            s_lshl_b32 s40, {s(sRB)}, 2
            s_add_u32 s41, s41, s40
            s_lshl_b32 s40, {s(sWR)}, 1
            s_add_u32 s41, s41, s40
            s_mul_i32 s41, s41, {TS}
            s_add_u32 s41, s41, {KVA+1536}""")
            for b in range(5):
                a(f"""v_mul_u32_u24 {v(t2)}, s42, {v(t0)}
                v_lshrrev_b32 {v(t2)}, 16, {v(t2)}
                v_mul_u32_u24 {v(t3)}, 20, {v(t2)}
                v_sub_u32 {v(t3)}, {v(t0)}, {v(t3)}
                v_mul_lo_u32 {v(t2)}, {v(t2)}, s43
                v_lshl_add_u32 {v(t2)}, {v(t3)}, 4, {v(t2)}
                v_add_u32 {v(vAW[b])}, {v(t2)}, {v(t1)}
                v_add_u32 {v(t0)}, 16, {v(t0)}""")
                for tt in range(2):
                    p = P + 8 * (b & 1) + 4 * tt
                    for j in range(2):
                        q = acc(2 * tt + j, b)
                        a(f"""v_cvt_pk_bf16_f32 {v(p+2*j)}, {v(q)}, {v(q+1)}
                        v_cvt_pk_bf16_f32 {v(p+2*j+1)}, {v(q+2)}, {v(q+3)}""")
                    a(f"buffer_store_dwordx4 {v(p,4)}, {v(vAW[b])}, {s(sWS,4)}, s41 offen offset:{TS*tt}")
            a("s_endpgm")
        else:
            a(f"""s_cmp_eq_u32 {s(sTYP)}, 1
            s_cbranch_scc1 {name}_e_k""")

    def qk_epi(isq):
        st = QS if isq else TS
        a(f"""v_and_b32 {v(t0)}, 15, v0
        v_lshrrev_b32 {v(t1)}, 4, v0
        s_mov_b32 s43, {64*st}
        v_mul_lo_u32 {v(t1)}, {v(t1)}, s43
        v_lshl_add_u32 {v(t2)}, {v(t0)}, 4, {v(t1)}
        v_lshl_add_u32 {v(t3)}, {v(t0)}, {3 if isq else 4}, {v(t1)}
        s_lshl_b32 s41, {s(sCB)}, 9
        s_lshl_b32 s40, {s(sWC)}, 8
        s_add_u32 s41, s41, s40
        s_lshl_b32 s40, {s(sRB)}, 2
        s_add_u32 s41, s41, s40
        s_lshl_b32 s40, {s(sWR)}, 1
        s_add_u32 s41, s41, s40
        s_mul_i32 s41, s41, {st}""")
        if isq:
            a(f"""s_cmp_eq_u32 {s(sTYP)}, 3
            s_cselect_b32 s40, {QB}, {QA}
            s_add_u32 s41, s41, s40
            s_mov_b32 s44, {f32(CSCALE)}
            s_mov_b32 s45, {f32(CSCALE)}""")
        else:
            a(f"s_add_u32 s41, s41, {KVA}")
        a(f"s_add_u32 s42, s41, {st}")
        for pb in range(4):
            P = XF[pb & 1]
            if isq:
                for b in range(5):
                    q = acc(pb, b)
                    a(f"""v_pk_mul_f32 {v(q,2)}, {v(q,2)}, s[44:45]
                    v_pk_mul_f32 {v(q+2,2)}, {v(q+2,2)}, s[44:45]""")
            for b in range(5):
                q = acc(pb, b)
                a(f"""v_cvt_pk_bf16_f32 {v(P+2*b)}, {v(q)}, {v(q+1)}
                v_cvt_pk_bf16_f32 {v(P+2*b+1)}, {v(q+2)}, {v(q+3)}""")
            so = "s42" if pb >> 1 else "s41"
            o = 256 * (pb & 1)
            if not isq and pb < 2:
                a(f"""v_mov_b32 {v(P+10)}, 0x3f803f80
                v_mov_b32 {v(P+11)}, 0x00003f80""")
            a(f"""buffer_store_dwordx4 {v(P,4)}, {v(t2)}, {s(sWS,4)}, {so} offen offset:{o}
            buffer_store_dwordx4 {v(P+4,4)}, {v(t2)}, {s(sWS,4)}, {so} offen offset:{o+512}""")
            if isq:
                a(f"buffer_store_dwordx2 {v(P+8,2)}, {v(t3)}, {s(sWS,4)}, {so} offen offset:{1024+o//2}")
            else:
                a(f"buffer_store_dwordx4 {v(P+8,4)}, {v(t3)}, {s(sWS,4)}, {so} offen offset:{1024+o}")
        a("s_endpgm")

    a(f"{name}_e_q:")
    qk_epi(True)
    a(f"{name}_e_k:")
    qk_epi(False)
    a(f"""{name}_end:
    s_endpgm""")
    return a.text(), kernel_desc(name, nvgpr), f"; @launch kernel={name} grid=(256,1,1) block=(512,1,1) lds={K1_LDS}"
```

```python
from asmlib import *
from layout import *

SLOT0, SLOT1 = 0, 32768
AOFF = 57344
ROFF = AOFF + 49152
K2_LDS = ROFF + 8 * 3072
CH = 8 * TS
NEG = 0xF149F2CA


def gen_k2(name="attn_kernel"):
    a = Asm()
    kernel_head(a, name)
    sWS = 8
    sW, sGRP, sP, sT, sHB, sHA, sPB, sTA = 12, 13, 14, 15, 16, 17, 18, 19
    sSRC, sM0, sCNT = 20, 21, 22
    R = Regs(1)
    vK1, vK2, vV, vIDX, vDMA = [R.get() for _ in range(5)]
    vA1, vA2, vAV = [R.get() for _ in range(3)]
    t0, t1, t2, t3, t4, t5 = [R.get() for _ in range(6)]
    QBr = [(R.get(4, 2), R.get(2, 2)) for _ in range(2)]
    QAr = (R.get(4, 2), R.get(2, 2))
    O = [R.get(16, 4), R.get(16, 4)]
    S = [R.get(16, 4), R.get(16, 4)]
    KK = [(R.get(4, 2), R.get(2, 2)) for _ in range(2)]
    VV = [R.get(8, 2), R.get(8, 2)]
    MD = R.get(16, 4)
    MF = R.get(16, 4)
    KA = [(R.get(4, 2), R.get(2, 2)) for _ in range(9)]
    nvgpr = R.hi

    def qk1(sb, q, k, c="0"):
        return f"v_mfma_f32_32x32x8bf16_1k {v(S[sb],16)}, {v(k[1],2)}, {v(q[1],2)}, {c}"

    def qk2(sb, q, k):
        return f"v_mfma_f32_32x32x16_bf16 {v(S[sb],16)}, {v(k[0],4)}, {v(q[0],4)}, {v(S[sb],16)}"

    def pv(sb, o, vb, h):
        return f"v_smfmac_f32_32x32x32_bf16 {v(o,16)}, {v(VV[vb]+4*h,4)}, {v(S[sb]+8*h,8)}, {v(vIDX)}"

    def ex(sb, i):
        return f"v_exp_f32 {v(S[sb]+i)}, {v(S[sb]+i)}"

    a(f"""s_cmp_ge_u32 s2, 256
    s_cbranch_scc1 {name}_end
    s_load_dwordx2 s[4:5], s[0:1], 80
    v_lshrrev_b32 v1, 6, v0
    v_and_b32 v0, 63, v0
    s_lshr_b32 {s(sT)}, s2, 2
    v_readfirstlane_b32 {s(sW)}, v1
    s_and_b32 s24, s2, 3
    s_lshl_b32 s24, s24, 3
    s_lshr_b32 {s(sGRP)}, {s(sW)}, 2
    s_and_b32 {s(sP)}, {s(sW)}, 3
    s_lshl_b32 s25, {s(sP)}, 1
    s_add_u32 s24, s24, s25
    s_add_u32 {s(sHB)}, s24, {s(sGRP)}
    s_and_b32 s24, s2, 7
    s_lshl_b32 s24, s24, 2
    s_lshr_b32 s25, s2, 6
    s_add_u32 {s(sHA)}, s24, s25
    s_bfe_u32 {s(sPB)}, s2, 0x30003
    s_lshl_b32 {s(sTA)}, {s(sPB)}, 3
    s_add_u32 {s(sTA)}, {s(sTA)}, {s(sW)}
    s_mul_i32 s26, {s(sW)}, 3072
    v_lshlrev_b32 {v(vK1)}, 4, v0
    v_add_u32 {v(vDMA)}, s26, {v(vK1)}
    v_and_b32 {v(t0)}, 31, v0
    v_lshlrev_b32 {v(t1)}, 3, {v(t0)}
    s_mov_b32 m0, s26
    s_mov_b32 {s(sSRC)}, {KVB}
    s_lshl_b32 s27, {s(sHB)}, 6
    s_add_u32 s27, s27, {s(sT)}
    s_mul_i32 s27, s27, {QS}
    s_add_u32 s27, s27, {QB}
    s_xor_b32 s28, {s(sHB)}, 1
    s_lshl_b32 s28, s28, 6
    s_add_u32 s28, s28, {s(sT)}
    s_mul_i32 s28, s28, {QS}
    s_add_u32 s28, s28, {QB}
    s_waitcnt lgkmcnt(0)""")
    srd(a, sWS, 4, WS_USED)

    def dma3(src):
        for i in range(3):
            a(f"buffer_load_dwordx4 {v(vDMA)}, {s(sWS,4)}, {src} offen offset:{1024*i} lds")

    dma3(s(sSRC))
    for q, so in ((0, "s27"), (1, "s28")):
        a(f"""buffer_load_dwordx4 {v(QBr[q][0],4)}, {v(vK1)}, {s(sWS,4)}, {so} offen
        buffer_load_dwordx2 {v(QBr[q][1],2)}, {v(t1)}, {s(sWS,4)}, {so} offen offset:1024""")
    a(f"""s_add_u32 m0, s26, {SLOT1}
    s_add_u32 {s(sSRC)}, {s(sSRC)}, {CH}""")
    dma3(s(sSRC))
    a(f"""s_add_u32 {s(sSRC)}, {s(sSRC)}, {CH}
    s_lshl_b32 s27, {s(sHA)}, 6
    s_lshl_b32 s28, {s(sPB)}, 3
    s_add_u32 s28, s28, s27
    s_mul_i32 s29, s28, {TS}
    s_add_u32 s29, s29, {KVA}
    s_add_u32 m0, s26, {AOFF + CH}
    s_add_u32 s27, s27, {s(sTA)}
    s_mul_i32 s27, s27, {QS}""")
    dma3("s29")
    a(f"""buffer_load_dwordx4 {v(QAr[0],4)}, {v(vK1)}, {s(sWS,4)}, s27 offen
    buffer_load_dwordx2 {v(QAr[1],2)}, {v(t1)}, {s(sWS,4)}, s27 offen offset:1024
    s_cmp_eq_u32 {s(sPB)}, 0
    s_cbranch_scc1 {name}_pb0
    s_add_u32 m0, s26, {AOFF}
    s_sub_u32 s29, s29, {CH}""")
    dma3("s29")
    a(f"{name}_setup:")
    a(f"""v_lshrrev_b32 {v(t2)}, 5, v0
    v_lshlrev_b32 {v(t3)}, 4, {v(t0)}
    v_lshl_add_u32 {v(vK2)}, {v(t2)}, 3, {v(t3)}
    v_add_u32 {v(vK2)}, 1024, {v(vK2)}
    v_mul_u32_u24 {v(vV)}, 336, {v(t2)}
    v_add_u32 {v(vV)}, {v(vV)}, {v(t3)}
    v_add_u32 {v(vV)}, 1536, {v(vV)}
    s_mul_i32 s27, {s(sW)}, {TS}
    s_add_u32 s27, s27, {AOFF}
    v_add_u32 {v(vA1)}, s27, {v(vK1)}
    v_add_u32 {v(vA2)}, s27, {v(vK2)}
    v_add_u32 {v(vAV)}, s27, {v(vV)}
    s_mul_i32 s27, {s(sGRP)}, {4*TS}
    v_add_u32 {v(vK1)}, s27, {v(vK1)}
    v_add_u32 {v(vK2)}, s27, {v(vK2)}
    v_add_u32 {v(vV)}, s27, {v(vV)}
    v_mov_b32 {v(vIDX)}, 0xdddddddd
    v_lshlrev_b32 {v(t2)}, 2, {v(t2)}
    v_sub_u32 {v(t2)}, {v(t0)}, {v(t2)}
    v_mov_b32 {v(t3)}, {NEG:#x}""")
    for r in range(16):
        b = 8 * (r >> 2) + (r & 3)
        sp = 30 + 2 * (r & 3)
        a(f"v_cmp_gt_i32 {s(sp,2)}, {b}, {v(t2)}")
        if (r & 3) == 3:
            for rr in range(r - 3, r + 1):
                sp = 30 + 2 * (rr & 3)
                a(f"""v_cndmask_b32 {v(MF+rr)}, {v(t3)}, 0, {s(sp,2)}
                v_cndmask_b32 {v(MD+rr)}, 0, {v(t3)}, {s(sp,2)}""")
    for i in range(16):
        a(f"""v_mov_b32 {v(O[0]+i)}, 0
        v_mov_b32 {v(O[1]+i)}, 0""")
    for i in range(8):
        a(f"v_mov_b32 {v(S[1]+8+i)}, 0")
    for i in range(4):
        a(f"v_mov_b32 {v(VV[1]+4+i)}, 0")
    a(f"""s_mov_b32 {s(sM0)}, s26
    s_mov_b32 {s(sCNT)}, 0
    s_cmp_eq_u32 {s(sPB)}, 0
    s_cbranch_scc1 {name}_w0
    s_waitcnt vmcnt(11)
{name}_w1:
    s_mov_b32 s28, 0
    s_mov_b32 s29, -1
    s_mov_b64 exec, s[28:29]""")
    for q in range(2):
        a(f"""v_mov_b32 {v(QBr[q][1])}, 0
        v_mov_b32 {v(QBr[q][1]+1)}, 0""")
    a("""s_mov_b64 exec, -1
    s_barrier""")

    def ldk(kb, j):
        return [f"ds_read_b128 {v(KK[kb][0],4)}, {v(vK1)} offset:{j*TS}",
                f"ds_read_b64 {v(KK[kb][1],2)}, {v(vK2)} offset:{j*TS}"]

    def ldv(vb, j, base=None):
        base = vV if base is None else base
        return [f"ds_read_b128 {v(VV[vb]+4*h,4)}, {v(base)} offset:{j*TS+672*h}" for h in range(2)]

    for l in ldk(0, 0) + ldv(0, 0):
        a(l)
    a("s_waitcnt lgkmcnt(2)")
    a(qk1(0, QBr[0], KK[0]))
    a(qk2(0, QBr[0], KK[0]))
    a("s_nop 7\ns_nop 3")
    a(f"{name}_bloop:")
    for j in range(4):
        for q in range(2):
            cur, oth = q, 1 - q
            pvb = (j - 1) & 1 if q == 0 else j & 1
            nkb = j & 1 if q == 0 else (j + 1) & 1
            a(pv(oth, O[oth], pvb, 1))
            for k in range(0, 4):
                a(ex(cur, k))
            if q == 1:
                a("s_waitcnt lgkmcnt(0)")
            a(qk1(oth, QBr[oth], KK[nkb]))
            for k in range(4, 8):
                a(ex(cur, k))
            a(qk2(oth, QBr[oth], KK[nkb]))
            for k in range(8, 12):
                a(ex(cur, k))
            if q == 0:
                a("s_waitcnt lgkmcnt(0)")
            a(pv(cur, O[cur], j & 1, 0))
            for k in range(12, 16):
                a(ex(cur, k))
            if q == 0:
                if j == 3:
                    a(f"""s_waitcnt vmcnt(0)
                    s_barrier
                    v_xor_b32 {v(vK1)}, 0x8000, {v(vK1)}
                    v_xor_b32 {v(vK2)}, 0x8000, {v(vK2)}
                    v_xor_b32 {v(vV)}, 0x8000, {v(vV)}
                    s_mov_b32 m0, {s(sM0)}
                    s_cmp_ge_u32 {s(sCNT)}, 6
                    s_cbranch_scc1 {name}_nodma""")
                    dma3(s(sSRC))
                    a(f"""{name}_nodma:
                    s_xor_b32 {s(sM0)}, {s(sM0)}, 0x8000
                    s_add_u32 {s(sSRC)}, {s(sSRC)}, {CH}""")
                for l in ldk((j + 1) & 1, (j + 1) & 3):
                    a(l)
            else:
                for l in ldv((j + 1) & 1, (j + 1) & 3):
                    a(l)
    a(f"""s_add_u32 {s(sCNT)}, {s(sCNT)}, 1
    s_cmp_lt_u32 {s(sCNT)}, 8
    s_cbranch_scc1 {name}_bloop""")
    a(pv(1, O[1], 1, 1))
    for u in range(9):
        a(f"""ds_read_b128 {v(KA[u][0],4)}, {v(vA1)} offset:{u*TS}
        ds_read_b64 {v(KA[u][1],2)}, {v(vA2)} offset:{u*TS}""")
    a(f"""s_mov_b64 exec, s[28:29]
    v_mov_b32 {v(QAr[1])}, 0
    v_mov_b32 {v(QAr[1]+1)}, 0x3f800000
    s_mov_b64 exec, -1
    v_lshlrev_b32 {v(t0)}, 4, v0
    s_xor_b32 s27, {s(sW)}, 4
    s_mul_i32 s27, s27, 3072
    s_add_u32 s27, s27, {ROFF}
    v_add_u32 {v(t1)}, s27, {v(t0)}
    s_waitcnt lgkmcnt(0)""")
    for i in range(3):
        a(f"ds_write_b128 {v(t1)}, {v(O[1]+4*i,4)} offset:{1024*i}")

    def cm(u):
        return v(MF, 16) if u == 0 else (v(MD, 16) if u == 8 else "0")

    mx = [t2, t3]

    def maxes(sb, first):
        L = []
        for i in range(8):
            m = mx[i & 1]
            if first and i < 2:
                L.append(f"v_max_f32 {v(m)}, {v(S[sb]+2*i)}, {v(S[sb]+2*i+1)}")
            else:
                L.append(f"v_max3_f32 {v(m)}, {v(S[sb]+2*i)}, {v(S[sb]+2*i+1)}, {v(m)}")
        return L

    a(qk1(0, QAr, KA[0], cm(0)))
    a(qk2(0, QAr, KA[0]))
    for u in range(1, 10):
        if u < 9:
            a(qk1(u & 1, QAr, KA[u], cm(u)))
            a(qk2(u & 1, QAr, KA[u]))
            if u == 1:
                for i in range(16):
                    a(f"v_mov_b32 {v(O[1]+i)}, 0")
            else:
                a("s_nop 1")
        else:
            a("s_nop 3")
        for l in maxes((u - 1) & 1, u == 1):
            a(l)
    for l in ldv(0, 0, vAV):
        a(l)
    a(f"""v_max_f32 {v(t2)}, {v(t2)}, {v(t3)}
    v_mov_b32 {v(t3)}, {v(t2)}
    s_nop 1
    v_permlane32_swap_b32 {v(t2)}, {v(t3)}
    s_nop 1
    v_max_f32 {v(t2)}, {v(t2)}, {v(t3)}
    s_mov_b32 s27, 0xffff0000
    v_xor_b32 {v(t2)}, 0x80000000, {v(t2)}
    v_and_b32 {v(t3)}, s27, {v(t2)}
    v_sub_f32 {v(t2)}, {v(t2)}, {v(t3)}
    v_and_b32 {v(t4)}, s27, {v(t2)}
    v_sub_f32 {v(t2)}, {v(t2)}, {v(t4)}
    v_lshrrev_b32 {v(t3)}, 16, {v(t3)}
    v_lshrrev_b32 {v(t2)}, 16, {v(t2)}
    s_mov_b64 exec, s[28:29]
    v_or_b32 {v(QAr[1])}, {v(t3)}, {v(t4)}
    v_or_b32 {v(QAr[1]+1)}, 0x3f800000, {v(t2)}
    s_mov_b64 exec, -1
    s_nop 1""")
    a(qk1(0, QAr, KA[0], cm(0)))
    a(qk2(0, QAr, KA[0]))
    a("s_nop 7\ns_nop 3")
    for u in range(9):
        cur, oth = u & 1, 1 - (u & 1)
        if u > 0:
            a(pv(oth, O[1], (u - 1) & 1, 1))
        else:
            a("s_nop 0")
        if u < 8:
            for l in ldv((u + 1) & 1, u + 1, vAV):
                a(l)
        for k in range(0, 4):
            a(ex(cur, k))
        if u < 8:
            a(qk1(oth, QAr, KA[u + 1], cm(u + 1)))
        for k in range(4, 8):
            a(ex(cur, k))
        if u < 8:
            a(qk2(oth, QAr, KA[u + 1]))
        for k in range(8, 12):
            a(ex(cur, k))
        a(f"s_waitcnt lgkmcnt({2 if u < 8 else 0})")
        a(pv(cur, O[1], u & 1, 0))
        for k in range(12, 16):
            a(ex(cur, k))
        a("s_nop 1")
    a(pv(0, O[1], 0, 1))

    def finish(o, region, sh, st):
        a(f"""v_mov_b32 {v(t2)}, {v(o+8)}
        v_mov_b32 {v(t3)}, {v(o+8)}
        v_and_b32 {v(t0)}, 15, v0
        v_bfe_u32 {v(t1)}, v0, 4, 1
        v_permlane32_swap_b32 {v(t2)}, {v(t3)}
        v_mul_u32_u24 {v(t1)}, 20480, {v(t1)}
        v_lshl_add_u32 {v(t0)}, {v(t0)}, 4, {v(t1)}
        v_rcp_f32 {v(t3)}, {v(t3)}
        v_lshrrev_b32 {v(t1)}, 5, v0
        v_lshl_add_u32 {v(t4)}, {v(t1)}, 8, {v(t0)}
        v_lshl_add_u32 {v(t5)}, {v(t1)}, 28, {v(t0)}
        s_mul_i32 s27, {st}, 40960
        s_add_u32 s27, s27, {region}
        s_lshl_b32 s30, {sh}, 9
        s_add_u32 s30, s30, s27
        s_lshr_b32 s31, {sh}, 1
        s_lshl_b32 s31, s31, 8
        s_add_u32 s27, s27, s31
        s_and_b32 s31, {sh}, 1
        s_lshl_b32 s31, s31, 3
        s_add_u32 s27, s27, s31
        s_add_u32 s27, s27, 16384""")
        for i in range(12):
            a(f"v_mul_f32 {v(o+i)}, {v(o+i)}, {v(t3)}")
        for i in range(6):
            a(f"v_cvt_pk_bf16_f32 {v(o+i)}, {v(o+2*i)}, {v(o+2*i+1)}")
        a(f"""buffer_store_dwordx4 {v(o,4)}, {v(t4)}, {s(sWS,4)}, s30 offen
        buffer_store_dwordx2 {v(o+4,2)}, {v(t5)}, {s(sWS,4)}, s27 offen""")

    a(f"""s_waitcnt lgkmcnt(0)
    s_barrier
    v_lshlrev_b32 {v(t0)}, 4, v0
    s_add_u32 s27, s26, {ROFF}
    v_add_u32 {v(t1)}, s27, {v(t0)}""")
    for i in range(3):
        a(f"ds_read_b128 {v(S[0]+4*i,4)}, {v(t1)} offset:{1024*i}")
    a("s_nop 6")
    finish(O[1], OA, s(sHA), s(sTA))
    a("s_waitcnt lgkmcnt(0)")
    for i in range(12):
        a(f"v_add_f32 {v(O[0]+i)}, {v(O[0]+i)}, {v(S[0]+i)}")
    o = O[0]
    a(f"""v_add_f32 {v(t0)}, abs({v(o+9)}), abs({v(o+10)})
    s_mov_b32 s30, -1
    s_mov_b32 s31, 0
    v_add_f32 {v(t0)}, {v(t0)}, abs({v(o+11)})
    v_add_f32 {v(t1)}, abs({v(o)}), abs({v(o+1)})
    v_cndmask_b32 {v(t0)}, 0, {v(t0)}, s[30:31]""")
    for i in range(2, 9):
        m = t1 if i & 1 else t0
        a(f"v_add_f32 {v(m)}, {v(m)}, abs({v(o+i)})")
    a(f"""v_add_f32 {v(t1)}, {v(t0)}, {v(t1)}
    s_mov_b32 s27, 0x7e800000
    v_cmp_ngt_f32 vcc, s27, {v(t1)}
    s_mov_b32 s27, 0x1f800000
    v_cmp_gt_f32 s[30:31], s27, {v(o+8)}
    s_and_b64 s[30:31], s[30:31], s[28:29]
    s_or_b64 vcc, vcc, s[30:31]
    s_cbranch_vccnz {name}_slow
{name}_fin:""")
    finish(O[0], OB, s(sHB), s(sT))
    a(f"""{name}_end:
    s_endpgm""")

    a(f"""{name}_pb0:
    s_lshl_b32 s27, {s(sW)}, 6
    v_add_u32 {v(t2)}, s27, v0
    v_mov_b32 {v(S[0])}, 0
    v_mov_b32 {v(S[0]+1)}, 0
    v_mov_b32 {v(S[0]+2)}, 0
    s_movk_i32 s28, 11651
    s_movk_i32 s29, 1440""")
    for i in range(3):
        a(f"""v_mul_u32_u24 {v(t3)}, s28, {v(t2)}
        v_lshrrev_b32 {v(t3)}, 21, {v(t3)}
        v_mul_u32_u24 {v(t3)}, 180, {v(t3)}
        v_sub_u32 {v(t3)}, {v(t2)}, {v(t3)}
        v_lshrrev_b32 {v(t3)}, 5, {v(t3)}
        v_cmp_eq_u32 vcc, 2, {v(t3)}
        v_mov_b32 {v(t4)}, 0xf1490000
        v_lshlrev_b32 {v(t3)}, 4, {v(t2)}
        v_cndmask_b32 {v(S[0]+3)}, 0, {v(t4)}, vcc
        v_cmp_gt_u32 vcc, s29, {v(t2)}
        s_and_saveexec_b64 s[30:31], vcc
        ds_write_b128 {v(t3)}, {v(S[0],4)} offset:{AOFF}
        s_mov_b64 exec, -1
        v_add_u32 {v(t2)}, 512, {v(t2)}""")
    a(f"""s_branch {name}_setup
{name}_w0:
    s_waitcnt vmcnt(8) lgkmcnt(0)
    s_branch {name}_w1""")

    k = KK[0]
    a(f"""{name}_slow:
    v_lshlrev_b32 {v(vK1)}, 4, v0
    v_and_b32 {v(t0)}, 31, v0
    v_lshrrev_b32 {v(t2)}, 5, v0
    v_lshlrev_b32 {v(t3)}, 4, {v(t0)}
    v_lshl_add_u32 {v(vK2)}, {v(t2)}, 3, {v(t3)}
    v_mul_u32_u24 {v(vV)}, 336, {v(t2)}
    v_add_u32 {v(vV)}, {v(vV)}, {v(t3)}
    v_mov_b32 {v(t2)}, 0xff7fffff
    s_mov_b32 s30, {KVB}
{name}_slow1:
    buffer_load_dwordx4 {v(k[0],4)}, {v(vK1)}, {s(sWS,4)}, s30 offen
    buffer_load_dwordx2 {v(k[1],2)}, {v(vK2)}, {s(sWS,4)}, s30 offen offset:1024
    s_waitcnt vmcnt(0)""")
    a(qk1(0, QBr[0], k))
    a(qk2(0, QBr[0], k))
    a("s_nop 7\ns_nop 3")
    for i in range(8):
        a(f"v_max3_f32 {v(t2)}, {v(S[0]+2*i)}, {v(S[0]+2*i+1)}, {v(t2)}")
    a(f"""s_add_u32 s30, s30, {TS}
    s_cmp_lt_u32 s30, {KVB+64*TS}
    s_cbranch_scc1 {name}_slow1
    v_mov_b32 {v(t3)}, {v(t2)}
    s_nop 1
    v_permlane32_swap_b32 {v(t2)}, {v(t3)}
    s_nop 1
    v_max_f32 {v(t2)}, {v(t2)}, {v(t3)}
    s_mov_b32 s27, 0xffff0000
    v_xor_b32 {v(t2)}, 0x80000000, {v(t2)}
    v_and_b32 {v(t3)}, s27, {v(t2)}
    v_sub_f32 {v(t2)}, {v(t2)}, {v(t3)}
    v_and_b32 {v(t4)}, s27, {v(t2)}
    v_sub_f32 {v(t2)}, {v(t2)}, {v(t4)}
    v_lshrrev_b32 {v(t3)}, 16, {v(t3)}
    v_lshrrev_b32 {v(t2)}, 16, {v(t2)}
    s_mov_b64 exec, s[28:29]
    v_or_b32 {v(QBr[0][1])}, {v(t3)}, {v(t4)}
    v_mov_b32 {v(QBr[0][1]+1)}, {v(t2)}
    s_mov_b64 exec, -1""")
    for i in range(16):
        a(f"v_mov_b32 {v(O[0]+i)}, 0")
    a(f"""s_mov_b32 s30, {KVB}
{name}_slow2:
    buffer_load_dwordx4 {v(k[0],4)}, {v(vK1)}, {s(sWS,4)}, s30 offen
    buffer_load_dwordx2 {v(k[1],2)}, {v(vK2)}, {s(sWS,4)}, s30 offen offset:1024
    buffer_load_dwordx4 {v(VV[0],4)}, {v(vV)}, {s(sWS,4)}, s30 offen offset:1536
    buffer_load_dwordx4 {v(VV[0]+4,4)}, {v(vV)}, {s(sWS,4)}, s30 offen offset:{1536+672}
    s_waitcnt vmcnt(0)""")
    a(qk1(0, QBr[0], k))
    a(qk2(0, QBr[0], k))
    a("s_nop 7\ns_nop 3")
    for i in range(16):
        a(ex(0, i))
    a("s_nop 1")
    a(pv(0, O[0], 0, 0))
    a(pv(0, O[0], 0, 1))
    a(f"""s_add_u32 s30, s30, {TS}
    s_cmp_lt_u32 s30, {KVB+64*TS}
    s_cbranch_scc1 {name}_slow2
    s_nop 7
    s_nop 3
    s_branch {name}_fin""")
    return a.text(), kernel_desc(name, nvgpr), f"; @launch kernel={name} grid=(256,1,1) block=(512,1,1) lds={K2_LDS}"
```

```python
from asmlib import *
from layout import *

K3_LDS = 102400


def gen_k3(name="outp_kernel"):
    a = Asm()
    kernel_head(a, name)
    sWS, sWO, sOUT = 8, 12, 16
    sW, sBR, sRB, sCB = 20, 21, 22, 23
    a(f"""s_cmp_ge_u32 s2, 256
    s_cbranch_scc1 {name}_end
    s_load_dwordx2 s[4:5], s[0:1], 16
    s_load_dwordx4 s[24:27], s[0:1], 56
    s_load_dwordx2 s[6:7], s[0:1], 80
    v_lshrrev_b32 v1, 6, v0
    v_and_b32 v0, 63, v0
    s_and_b32 {s(sBR)}, s2, 1
    v_readfirstlane_b32 {s(sW)}, v1
    s_bfe_u32 {s(sRB)}, s2, 0x20001
    s_lshl_b32 {s(sRB)}, {s(sRB)}, 2
    s_lshr_b32 s28, s2, 6
    s_add_u32 {s(sRB)}, {s(sRB)}, s28
    s_bfe_u32 {s(sCB)}, s2, 0x30003
    s_cmp_ge_u32 {s(sW)}, 4
    s_cbranch_scc0 {name}_compute""")
    a(f"""s_sub_u32 s29, {s(sW)}, 4
    s_lshl_b32 s30, s29, 6
    v_add_u32 v2, s30, v0
    s_movk_i32 s31, 6554
    s_movk_i32 s32, 1280
    s_mul_i32 s33, {s(sCB)}, 160
    s_lshl_b32 s34, s29, 10""")
    for i in range(5):
        a(f"""v_mul_u32_u24 v3, s31, v2
        v_lshrrev_b32 v3, 16, v3
        v_mul_u32_u24 v4, 10, v3
        v_sub_u32 v4, v2, v4
        v_mul_u32_u24 v3, s32, v3
        v_lshl_add_u32 v{8+i}, v4, 4, v3
        v_add_u32 v2, 256, v2""")
    a(f"""s_cmp_eq_u32 {s(sBR)}, 1
    s_waitcnt lgkmcnt(0)
    s_cselect_b32 {s(sWO)}, s24, s4
    s_cselect_b32 {s(sWO+1)}, s25, s5
    s_mov_b32 {s(sWO+2)}, {640*1280}
    s_mov_b32 {s(sWO+3)}, 0x00020000
    s_mov_b32 s35, 5
{name}_lloop:""")
    for i in range(5):
        a(f"""s_add_u32 m0, s34, {4096*i}
        s_nop 0
        buffer_load_dwordx4 v{8+i}, {s(sWO,4)}, s33 offen lds""")
    a(f"""s_add_u32 s34, s34, 20480
    s_add_u32 s33, s33, {128*1280}
    s_sub_u32 s35, s35, 1
    s_cmp_lg_u32 s35, 0
    s_cbranch_scc1 {name}_lloop
    s_waitcnt vmcnt(18)
    s_barrier
    s_waitcnt vmcnt(12)
    s_barrier
    s_waitcnt vmcnt(6)
    s_barrier
    s_waitcnt vmcnt(0)
    s_barrier
    s_endpgm""")
    R = Regs(1)
    vO, vM, vP, t0, t1, t2, t3 = [R.get() for _ in range(7)]
    ACC = R.get(40, 4)
    WF = [R.get(20, 4), R.get(20, 4)]
    OF = R.get(160, 4)
    nvgpr = R.hi

    def of(ph, st, tb):
        return OF + 4 * (10 * ph + 2 * st + tb)

    def acc(tb, b):
        return ACC + 4 * (5 * tb + b)

    a(f"""{name}_compute:
    v_lshlrev_b32 {v(vO)}, 4, v0
    s_lshl_b32 s28, {s(sRB)}, 2
    s_add_u32 s28, s28, {s(sW)}
    s_mul_i32 s29, s28, 40960
    s_cmp_eq_u32 {s(sBR)}, 1
    s_cselect_b32 s30, {OB-OA}, 0
    s_add_u32 s29, s29, s30
    s_add_u32 s29, s29, {OA}
    s_waitcnt lgkmcnt(0)""")
    srd(a, sWS, 6, WS_USED)
    a(f"s_add_u32 s30, s29, 20480")
    for ph in range(4):
        for st in range(5):
            ks = 4 * ph + st if st < 4 else 16 + ph
            for tb in range(2):
                so = 29 + tb if st < 4 else 31 + tb
                if ph == 0 and st == 4 and tb == 0:
                    a("s_add_u32 s31, s29, 16384\ns_add_u32 s32, s30, 16384")
                off = 1024 * st if st < 4 else 1024 * ph
                a(f"buffer_load_dwordx4 {v(of(ph,st,tb),4)}, {v(vO)}, {s(sWS,4)}, s{so} offen offset:{off}")
        if ph < 3:
            a("s_add_u32 s29, s29, 4096\ns_add_u32 s30, s30, 4096")
    srd(a, sOUT, 26, 2048 * 2560)
    a(f"""v_lshrrev_b32 {v(t0)}, 4, v0
    v_bfe_u32 {v(t1)}, v0, 2, 2
    v_and_b32 {v(t2)}, 3, v0
    v_lshlrev_b32 {v(t2)}, 3, {v(t2)}
    v_mul_u32_u24 {v(t3)}, 40, {v(t0)}
    v_add3_u32 {v(t3)}, {v(t3)}, {v(t1)}, 16
    v_mul_u32_u24 {v(t3)}, 160, {v(t3)}
    v_add_u32 {v(vP)}, {v(t3)}, {v(t2)}
    v_lshrrev_b32 {v(t3)}, 1, {v(t0)}
    v_mul_u32_u24 {v(t3)}, 20, {v(t3)}
    v_and_b32 {v(t0)}, 1, {v(t0)}
    v_lshl_add_u32 {v(t3)}, {v(t0)}, 2, {v(t3)}
    v_add_u32 {v(t3)}, {v(t3)}, {v(t1)}
    v_mul_u32_u24 {v(t3)}, 160, {v(t3)}
    v_add_u32 {v(vM)}, {v(t3)}, {v(t2)}""")
    for i in range(40):
        a(f"v_mov_b32 {v(ACC+i)}, 0")

    def reads(buf, st):
        L = []
        for b in range(5):
            for u in range(2):
                if st < 4:
                    L.append(f"ds_read_b64_tr_b16 {v(WF[buf]+4*b+2*u,2)}, {v(vM)} offset:{6400*st+1280*u+32*b}")
                else:
                    L.append(f"ds_read_b64_tr_b16 {v(WF[buf]+4*b+2*u,2)}, {v(vP)} offset:{3200*u+32*b}")
        return L

    def mf(buf, ph, st):
        return [f"v_mfma_f32_16x16x32_bf16 {v(acc(tb,b),4)}, {v(WF[buf]+4*b,4)}, {v(of(ph,st,tb),4)}, {v(acc(tb,b),4)}"
                for b in range(5) for tb in range(2)]

    a("s_barrier")
    for l in reads(0, 0):
        a(l)
    n = 0
    for ph in range(4):
        for st in range(5):
            buf = n & 1
            n += 1
            w = "s_waitcnt lgkmcnt(0)"
            if st == 0:
                w = f"s_waitcnt vmcnt({30-10*ph}) lgkmcnt(0)"
            a(w)
            if st < 4:
                nxt = reads(1 - buf, st + 1)
            elif ph < 3:
                a(f"""s_barrier
                v_add_u32 {v(vM)}, 25600, {v(vM)}
                v_add_u32 {v(vP)}, 25600, {v(vP)}""")
                nxt = reads(1 - buf, 0)
            else:
                nxt = []
            for l in interleave(mf(buf, ph, st), nxt):
                a(l)
    a(f"""v_and_b32 {v(t0)}, 15, v0
    v_lshrrev_b32 {v(t1)}, 4, v0
    v_mul_u32_u24 {v(t0)}, 2560, {v(t0)}
    v_lshl_add_u32 {v(t3)}, {v(t1)}, 3, {v(t0)}
    v_and_b32 {v(t2)}, 1, {v(t1)}
    v_lshl_add_u32 {v(t0)}, {v(t2)}, 5, {v(t0)}
    v_lshrrev_b32 {v(t2)}, 1, {v(t1)}
    v_lshl_add_u32 {v(t0)}, {v(t2)}, 4, {v(t0)}
    s_mul_i32 s29, s28, {32*2560}
    s_mul_i32 s30, {s(sBR)}, 1280
    s_add_u32 s29, s29, s30
    s_mul_i32 s30, {s(sCB)}, 160
    s_add_u32 s29, s29, s30
    s_add_u32 s30, s29, {16*2560}""")
    for tb in range(2):
        P = WF[tb]
        for b in range(5):
            q = acc(tb, b)
            a(f"""v_cvt_pk_bf16_f32 {v(P+2*b)}, {v(q)}, {v(q+1)}
            v_cvt_pk_bf16_f32 {v(P+2*b+1)}, {v(q+2)}, {v(q+3)}""")
        for pr in range(2):
            a(f"""v_permlane16_swap_b32 {v(P+4*pr)}, {v(P+4*pr+2)}
            v_permlane16_swap_b32 {v(P+4*pr+1)}, {v(P+4*pr+3)}""")
        a(f"""buffer_store_dwordx2 {v(P+8,2)}, {v(t3)}, {s(sOUT,4)}, s{29+tb} offen offset:128
        buffer_store_dwordx4 {v(P,4)}, {v(t0)}, {s(sOUT,4)}, s{29+tb} offen
        buffer_store_dwordx4 {v(P+4,4)}, {v(t0)}, {s(sOUT,4)}, s{29+tb} offen offset:64""")
    a(f"""{name}_end:
    s_endpgm""")
    return a.text(), kernel_desc(name, nvgpr), f"; @launch kernel={name} grid=(256,1,1) block=(512,1,1) lds={K3_LDS}"
```

```python
import math
QS = 1280
TS = 2880
QA = 0
QB = 2621440
KVA = 5242880
KVB = KVA + 32 * 64 * TS + 4096
OA = KVB + 64 * TS + 8192
OB = OA + 2621440
WS_USED = OB + 2621440
CSCALE = (20 ** -0.5) * math.log2(math.e)
```

```python
import sys
from k1 import gen_k1
from k2 import gen_k2
from k3 import gen_k3
HEAD = open("concat_heads__sliding_block__grouped_kv_mqa__prompt.s.ref").read().split("; Override launch")[0]
def build(parts):
    s = HEAD + "".join(p[2] + "\n" for p in parts)
    s += '.amdgcn_target "amdgcn-amd-amdhsa--gfx950"\n.text\n'
    seen=set()
    for p in parts:
        if p[1] in seen: continue
        seen.add(p[1]); s += p[0]
    seen=set()
    for p in parts:
        if p[1] in seen: continue
        seen.add(p[1]); s += p[1]
    return s
if __name__ == "__main__":
    out = sys.argv[1] if len(sys.argv) > 1 else "concat_heads__sliding_block__grouped_kv_mqa__prompt.s"
    open(out, "w").write(build([gen_k1(), gen_k2(), gen_k3()]))
```
